```python
import torch

def _softmax(x, axis=-1):
    return torch.softmax(x, dim=axis)
def _gelu(x):
    return torch.nn.functional.gelu(x, approximate="tanh")
def _silu(x):
    return torch.nn.functional.silu(x)
def _sigmoid(x):
    return torch.sigmoid(x)
def _layernorm(x, axis=-1, eps=1e-5):
    m = x.mean(dim=axis, keepdim=True)
    v = x.var(dim=axis, keepdim=True, unbiased=False)
    return (x - m) / torch.sqrt(v + eps)
def _scatter_add(tgt, idx, src, axis=0):
    return tgt.clone().index_add_(axis, idx, src)
def _segment_sum(src, seg, n):
    out = torch.zeros((n,) + src.shape[1:], dtype=src.dtype)
    return out.index_add_(0, seg, src)
def _pad(x, pw):
    flat = tuple(v for pair in reversed(pw) for v in pair)
    return torch.nn.functional.pad(x, flat)

kernel_name = 'sequential_preLN__sliding_block_cached__swiglu_ffn__decode'

def setup_inputs():

    _w = (lambda a: (lambda t: t.to(torch.bfloat16) if t.is_floating_point() else t)(torch.as_tensor(a)))
    def _A_setup():
        B, Sq, D = 4, 1, 448
        Hq, Hkv, Sk, Dh = 16, 8, 4096, 256
        assert Hq % Hkv == 0, (Hq, Hkv)
        return {
            "x": _w((lambda *s: torch.randn(*s, dtype=torch.bfloat16) * 0.05)(B, Sq, D)),
            "k_cache": _w((lambda *s: torch.randn(*s, dtype=torch.bfloat16) * 3.2)(B, Hkv, Sk, Dh)),
            "v_cache": _w((lambda *s: torch.randn(*s, dtype=torch.bfloat16) * 0.4)(B, Hkv, Sk, Dh)),
            "wq": _w((lambda *s: torch.randn(*s, dtype=torch.bfloat16) * 3.2)(D, Hq * Dh) * (D ** -0.5)),
            "wo": _w((lambda *s: torch.randn(*s, dtype=torch.bfloat16) * 0.4)(Hq * Dh, D) * ((Hq * Dh) ** -0.5)),
        }
    _A_in = _A_setup()

    def _B_setup():
        B, S, D, F = 4, 1, 448, 1792
        return {
            "x": _w((lambda *s: torch.randn(*s, dtype=torch.bfloat16) * 0.05)(B, S, D)),
            "w_gate": _w((lambda *s: torch.randn(*s, dtype=torch.bfloat16) * 0.05)(D, F)),
            "w_up": _w((lambda *s: torch.randn(*s, dtype=torch.bfloat16) * 0.05)(D, F)),
            "w_down": _w((lambda *s: torch.randn(*s, dtype=torch.bfloat16) * 0.05)(F, D)),
        }
    _B_in = _B_setup()

    return {
        "A_x": _A_in["x"],
        "A_k_cache": _A_in["k_cache"],
        "A_v_cache": _A_in["v_cache"],
        "A_wq": _A_in["wq"],
        "A_wo": _A_in["wo"],
        "B_x": _B_in["x"],
        "B_w_gate": _B_in["w_gate"],
        "B_w_up": _B_in["w_up"],
        "B_w_down": _B_in["w_down"],
    }

def reference(A_x, A_k_cache, A_v_cache, A_wq, A_wo, B_x, B_w_gate, B_w_up, B_w_down):
    def _A_ref(x, k_cache, v_cache, wq, wo):
        B, Sq, D = x.shape
        Hq, Dh = 16, 256
        Hkv, Sk = k_cache.shape[1], k_cache.shape[2]
        W = min(4096, max(256, Sk // 4))
        rep = Hq // Hkv
        q = (lambda x, *d: x.permute(*d))((x @ wq).reshape(B, Sq, Hq, Dh), 0, 2, 1, 3)
        k = (lambda x, n, axis: torch.repeat_interleave(x, n, dim=axis))(k_cache[:, :, Sk - W:, :], rep, axis=1)
        v = (lambda x, n, axis: torch.repeat_interleave(x, n, dim=axis))(v_cache[:, :, Sk - W:, :], rep, axis=1)
        scores = torch.einsum("bhqd,bhkd->bhqk", q, k) * (Dh ** -0.5)
        p = _softmax(scores, axis=-1)
        o = torch.einsum("bhqk,bhkd->bhqd", p, v)
        return (lambda x, *d: x.permute(*d))(o, 0, 2, 1, 3).reshape(B, Sq, Hq * Dh) @ wo

    def _B_ref(x, w_gate, w_up, w_down):
        g = _silu(x @ w_gate)
        u = x @ w_up
        return (g * u) @ w_down

    x = A_x
    h = x + _A_ref(_layernorm(x, axis=-1), A_k_cache, A_v_cache, A_wq, A_wo)
    h2 = h + _B_ref(_layernorm(h, axis=-1), B_w_gate, B_w_up, B_w_down)
    return h2
```

```python
import re, subprocess, os

REG = re.compile(r'\b([vsa])(\d+)\b|\b([vsa])\[(\d+):(\d+)\]|\b(vcc|exec|m0|scc)\b')

def regs_of(tok):
    out = set()
    for m in REG.finditer(tok):
        if m.group(1):
            out.add((m.group(1), int(m.group(2))))
        elif m.group(3):
            for i in range(int(m.group(4)), int(m.group(5)) + 1):
                out.add((m.group(3), i))
        else:
            out.add((m.group(6), 0))
    return out

TRANS = ("v_exp_f32", "v_log_f32", "v_rcp_f32", "v_rsq_f32", "v_sqrt_f32", "v_sin_f32", "v_cos_f32")

class Ins:
    def __init__(self, text):
        self.text = text
        t = text.split(";")[0].strip()
        self.op = t.split()[0] if t else ""
        rest = t[len(self.op):].strip()
        ops = []
        depth = 0; cur = ""
        for ch in rest:
            if ch == "[": depth += 1
            if ch == "]": depth -= 1
            if ch == "," and depth == 0:
                ops.append(cur.strip()); cur = ""
            else:
                cur += ch
        if cur.strip(): ops.append(cur.strip())
        if ops:
            last = ops[-1].split()
            self.mods = " ".join(last[1:])
            ops[-1] = last[0]
        else:
            self.mods = ""
        self.ops = ops
        op = self.op
        self.is_label = op.endswith(":")
        self.is_dir = op.startswith(".")
        self.mfma = op.startswith("v_mfma")
        self.valu = op.startswith("v_") and not self.mfma
        self.salu = op.startswith("s_")
        self.vmem = op.startswith(("global_", "buffer_", "flat_"))
        self.ds = op.startswith("ds_")
        self.dpp = "_dpp" in op
        self.perml = op.startswith("v_permlane")
        self.trans = op.replace("_e32", "").replace("_e64", "") in TRANS
        self.w = set(); self.r = set()
        R = [regs_of(o) for o in ops]
        if self.valu or self.mfma:
            if op.startswith("v_cmp"):
                self.w |= R[0]; [self.r.update(x) for x in R[1:]]
            elif self.perml:
                self.w |= R[0] | R[1]; self.r |= R[0] | R[1]
            elif op.startswith(("v_add_co", "v_sub_co", "v_addc_co", "v_subb_co")):
                self.w |= R[0] | R[1]; [self.r.update(x) for x in R[2:]]
            else:
                self.w |= R[0]; [self.r.update(x) for x in R[1:]]
                if op.startswith(("v_fmac", "v_writelane", "v_pk_fmac")) or self.dpp:
                    self.r |= R[0]
            if self.mfma:
                self.srcA, self.srcB, self.srcC = R[1], R[2], R[3]
        elif self.vmem:
            if "load" in op and "lds" not in op:
                self.w |= R[0]; [self.r.update(x) for x in R[1:]]
            else:
                [self.r.update(x) for x in R]
                if "lds" in op: self.r.add(("m0", 0))
            self.data = R[1] if ("store" in op and op.startswith("global")) else (R[0] if "store" in op else set())
        elif self.ds:
            if "read" in op or "permute" in op or "swizzle" in op:
                self.w |= R[0]; [self.r.update(x) for x in R[1:]]
            else:
                [self.r.update(x) for x in R]
        elif self.salu:
            if op.startswith(("s_cmp", "s_cbranch", "s_branch", "s_waitcnt", "s_nop", "s_barrier", "s_endpgm", "s_sleep", "s_setprio", "s_bitcmp")):
                [self.r.update(x) for x in R]
            elif R:
                self.w |= R[0]; [self.r.update(x) for x in R[1:]]
                if "saveexec" in op: self.w.add(("exec", 0))
    def states(self):
        if self.op == "s_nop": return int(self.ops[0], 0) + 1
        return 1

def vg(s): return {x for x in s if x[0] in "va"}
def sg(s): return {x for x in s if x[0] == "s" or x[0] == "vcc"}

def need(p, c):
    n = 0
    if p.valu:
        wv = vg(p.w); ws = sg(p.w)
        if c.valu and c.dpp and wv & c.r: n = max(n, 2)
        if c.perml and wv & c.r: n = max(n, 2)
        if c.mfma and wv & c.r: n = max(n, 2)
        if c.op.startswith(("v_readlane", "v_readfirstlane")) and wv & c.r: n = max(n, 1)
        if p.trans and (c.valu or c.mfma) and not c.trans and wv & c.r: n = max(n, 1)
        if p.trans and (c.vmem or c.ds) and wv & c.r: n = max(n, 1)
        if ws and c.valu and ws & c.r: n = max(n, 4 if c.op.startswith(("v_readlane", "v_writelane")) else 2)
        if ws and c.vmem and ws & c.r: n = max(n, 5)
        if "op_sel" in p.mods and c.valu and wv & (c.r | c.w) and not p.op.startswith("v_pk_"): n = max(n, 1)
    if p.mfma:
        passes = 8 if "32x32" in p.op else 4
        tbl = {4: (6, 8, 8, 3), 8: (10, 12, 12, 7)}[passes]
        if c.mfma:
            if p.w & c.srcC and p.w != c.srcC: n = max(n, tbl[0])
            if p.w & (c.srcA | c.srcB): n = max(n, tbl[1])
            if p.w & c.w and not (p.w & c.srcC): n = max(n, tbl[0])
        elif c.valu:
            if p.w & (c.r | c.w): n = max(n, tbl[2])
            if p.srcC & c.w: n = max(n, tbl[3])
        elif c.vmem or c.ds:
            if p.w & (c.r | c.w): n = max(n, tbl[2])
    if p.salu and ("m0", 0) in p.w and c.vmem and ("m0", 0) in c.r: n = max(n, 1)
    if p.vmem and "store" in p.op and ("x4" in p.op or "x3" in p.op) and p.data & c.w:
        n = max(n, 2 if c.valu else 1)
    if p.salu and ("exec", 0) in p.w and c.valu and (c.dpp or c.perml): n = max(n, 1)
    return n

def fix_hazards(lines):
    out = []
    hist = []
    for l in lines:
        ins = Ins(l)
        if not ins.op or ins.is_dir or ins.is_label:
            out.append(l); continue
        dist = 0; req = 0
        for p in reversed(hist):
            if dist >= 12: break
            req = max(req, need(p, ins) - dist)
            dist += p.states()
        if req > 0:
            nop = Ins(f"    s_nop {req-1}")
            out.append(nop.text); hist.append(nop)
        out.append(l); hist.append(ins)
        if len(hist) > 16: hist.pop(0)
    return out

CLANG = "clang"; OBJDUMP = "llvm-objdump"

def sizes(lines):
    src = '.amdgcn_target "amdgcn-amd-amdhsa--gfx950"\n.text\nk:\n' + "\n".join(lines) + "\n"
    open("_sz.s", "w").write(src)
    r = subprocess.run([CLANG, "-x", "assembler", "-target", "amdgcn-amd-amdhsa", "-mcpu=gfx950", "-c", "_sz.s", "-o", "_sz.o"], capture_output=True, text=True)
    if r.returncode:
        raise SystemExit(r.stderr)
    d = subprocess.run([OBJDUMP, "-d", "-z", "--mcpu=gfx950", "_sz.o"], capture_output=True, text=True).stdout
    sz = []
    for l in d.splitlines():
        m = re.search(r"//\s*([0-9A-Fa-f]+):\s*((?:[0-9A-Fa-f]{8}\s*)+)", l)
        if m: sz.append(4 * len(m.group(2).split()))
    return sz

def insert_pads(lines, stride=240):
    lines = [l for l in lines if l.strip()]
    plain = [(l.split()[1] + "_0:") if l.strip().startswith(";@chain") else l for l in lines if l.strip().startswith(";@chain") or not l.strip().startswith(";@")]
    assert not any(Ins(l).is_dir for l in plain), "directives not supported before pad insertion"
    sz = iter(sizes(plain))
    out = []; chain = None; idx = 0; acc = 0; allow = True
    for l in lines:
        t = l.strip()
        if t.startswith(";@chain"):
            chain = t.split()[1]; idx = 0; acc = 0
            out.append(f"{chain}_0:"); out.append(f"    s_cbranch_execz {chain}_1"); idx = 1; acc = 4
            continue
        if t.startswith(";@endchain"):
            _, name, target = t.split()
            out.append(f"{chain}_{idx}:"); out.append(f"    s_cbranch_execz {target}")
            chain = None
            continue
        if t == ";@nopad": allow = False; continue
        if t == ";@pad": allow = True; continue
        ins = Ins(l)
        if ins.op and not ins.is_label:
            s = next(sz)
            if chain and allow and acc + s > stride:
                out.append(f"{chain}_{idx}:"); out.append(f"    s_cbranch_execz {chain}_{idx+1}")
                idx += 1; acc = 4
            acc += s
        out.append(l)
    return out
```

```python
KN = "sequential_preLN__sliding_block_cached__swiglu_ffn__decode"
HEADER = open("cdna_kernels/" + KN + ".s.ref").read().split("; Override launch")[0]

class Asm:
    def __init__(self):
        self.lines = []
        self.nlab = 0
    def __call__(self, s):
        for l in s.strip("\n").split("\n"):
            self.lines.append("    " + l.strip() if not l.strip().endswith(":") else l.strip())
    def label(self, base="L"):
        self.nlab += 1
        return f"{base}_{self.nlab}"
    def text(self):
        return "\n".join(self.lines) + "\n"

def wrap(body, grid, block, lds, vgpr=256, sgpr=102, accum=None, name=KN + "_kernel"):
    if accum is None:
        accum = min(256, (vgpr + 3) // 4 * 4)
    return (HEADER +
        f"; @launch grid=({grid},1,1) block=({block},1,1) lds={lds}\n"
        '.amdgcn_target "amdgcn-amd-amdhsa--gfx950"\n.text\n'
        f".globl {name}\n.p2align 8\n.type {name},@function\n{name}:\n" + body +
        '.section .rodata,"a"\n.p2align 6\n'
        f".amdhsa_kernel {name}\n"
        f"  .amdhsa_next_free_vgpr {vgpr}\n  .amdhsa_next_free_sgpr {sgpr}\n  .amdhsa_accum_offset {accum}\n"
        "  .amdhsa_group_segment_fixed_size 0\n  .amdhsa_kernarg_size 96\n"
        "  .amdhsa_user_sgpr_count 2\n  .amdhsa_user_sgpr_kernarg_segment_ptr 1\n"
        "  .amdhsa_system_sgpr_workgroup_id_x 1\n"
        ".end_amdhsa_kernel\n")
```

```python
import sys, struct
from glib import *
import asmkit

def f32(x): return "0x%08x" % struct.unpack("<I", struct.pack("<f", x))[0]

WS_EPOCH = 0
WS_FLAGS = 0x1000
WS_Q     = 0x2000
WS_O     = 0x20000
WS_ST    = 0x60000
WS_HP    = 0x64000
WS_DP    = 0x80000
WS_STAMP = 128 << 20
L_Q   = 0
L_TAG = 1024
L_MX  = 1088
L_RED = 2048
L_RED2 = 18432
L_LNS = 26624
L_H   = 27136
L_XN  = 30720
L_WQ  = 34816
L_END = L_WQ + 14336
C_SM = 0.0625 * 1.4426950408889634
NSTAMP = 16

def gen(D=3, nt_kv="nt", nt_w="nt", nt_wq="", stamps=False, warm=True, spin=1 << 18):
    a = Asm()
    def m(x): return (" " + x) if x else ""
    KV, WT, WQ = m(nt_kv), m(nt_w), m(nt_wq)
    def stamp(i):
        if stamps: a(f"s_memrealtime s[{60+2*i}:{61+2*i}]")
    def flush_stamps(ids, wave=None):
        if not stamps: return
        lab = a.label("st")
        a(";@nopad")
        if wave is not None:
            a(f"s_cmp_eq_u32 s28, {wave}\ns_cbranch_scc0 {lab}")
        a(f"""
        s_waitcnt lgkmcnt(0)
        s_mov_b64 exec, 1
        s_mul_i32 s38, s2, {NSTAMP*8}
        s_add_u32 s38, s38, {WS_STAMP}
        v_mov_b32 v4, s38
        """)
        for i in ids:
            a(f"v_mov_b32 v6, s{60+2*i}\nv_mov_b32 v7, s{61+2*i}\nglobal_store_dwordx2 v4, v[6:7], s[26:27] offset:{8*i}")
        a(f"s_mov_b64 exec, -1\n{lab}:")
        a(";@pad")
    DPP = "row_mask:0xf bank_mask:0xf"
    def row_reduce(op, v, t, steps):
        for st in steps:
            a(f"{op}_dpp v{t}, v{v}, v{v} {st} {DPP}")
            v, t = t, v
        return v
    def swap_reduce(op, v, t, which=("16", "32")):
        for wd in which:
            a(f"v_mov_b32 v{t}, v{v}\nv_permlane{wd}_swap_b32 v{v}, v{t}\n{op} v{v}, v{v}, v{t}")
    def rbf(d, s):
        a(f"v_cvt_pk_bf16_f32 v{d}, v{s}, v{s}\nv_lshlrev_b32 v{d}, 16, v{d}")
    def spin_head(lab, done):
        a(f"s_mov_b32 s52, 0\n{lab}:\ns_add_u32 s52, s52, 1\ns_cmp_gt_u32 s52, {spin}\ns_cbranch_scc1 {done}")
    def sent_check(regs, t, lab):
        regs = list(regs)
        a(f"v_max_u32 v{t}, v{regs[0]}, v{regs[1]}")
        rest = regs[2:]
        while rest:
            if len(rest) >= 2:
                a(f"v_max3_u32 v{t}, v{t}, v{rest[0]}, v{rest[1]}"); rest = rest[2:]
            else:
                a(f"v_max_u32 v{t}, v{t}, v{rest[0]}"); rest = rest[1:]
        a(f"v_cmp_eq_u32 vcc, -1, v{t}\ns_cbranch_vccnz {lab}")

    a(f"""
    s_cmp_ge_u32 s2, 256
    s_cbranch_scc1 L_end
    s_load_dwordx16 s[4:19], s[0:1], 0
    s_load_dwordx8 s[20:27], s[0:1], 64
    """)
    stamp(0)
    a(f"""
    v_lshrrev_b32 v4, 6, v0
    v_and_b32 v1, 63, v0
    v_readfirstlane_b32 s28, v4
    v_and_b32 v2, 15, v0
    v_bfe_u32 v3, v0, 4, 2
    s_and_b32 s29, s2, 7
    s_lshr_b32 s30, s2, 3
    s_lshr_b32 s31, s2, 6
    s_and_b32 s32, s30, 7
    s_cmp_eq_u32 s28, 0
    s_cbranch_scc1 L_qwave
    s_cmp_gt_u32 s28, 8
    s_cbranch_scc1 L_warm
    s_sub_u32 s28, s28, 1
    s_lshl_b32 s34, s31, 3
    s_add_u32 s34, s34, s29
    s_lshl_b32 s34, s34, 21
    s_lshl_b32 s35, s32, 16
    s_add_u32 s34, s34, s35
    s_lshl_b32 s35, s28, 13
    s_add_u32 s34, s34, s35
    s_add_u32 s34, s34, {3072*512}
    v_lshlrev_b32 v4, 9, v2
    v_lshl_add_u32 v4, v3, 4, v4
    v_add_u32 v4, s34, v4
    v_lshlrev_b32 v5, 11, v3
    v_lshl_add_u32 v5, v2, 4, v5
    v_add_u32 v5, s34, v5
    s_waitcnt lgkmcnt(0)
    """)
    n = 0
    for i in range(8):
        if n >= D: a(f"s_waitcnt vmcnt({D-1})")
        a(f"global_load_dwordx4 v[{16+4*i}:{19+4*i}], v4, s[6:7] offset:{i*64}{KV}"); n += 1
    for T in range(4):
        for dh in range(2):
            if n >= D: a(f"s_waitcnt vmcnt({D-1})")
            r0 = 48 + 4 * (2 * T + dh)
            a(f"global_load_dwordx4 v[{r0}:{r0+3}], v5, s[8:9] offset:{T*512+dh*256}{KV}"); n += 1
    a("s_branch L_attn")

    a("L_qwave:")
    a(f"""
    s_setprio 3
    v_mul_u32_u24 v4, 56, v1
    v_lshrrev_b32 v5, 1, v1
    v_and_b32 v6, 1, v1
    v_lshlrev_b32 v5, 13, v5
    v_lshl_add_u32 v5, v6, 4, v5
    s_lshl_b32 s34, s29, 10
    s_lshl_b32 s35, s30, 5
    s_add_u32 s34, s34, s35
    v_add_u32 v5, s34, v5
    v_mov_b32 v7, 0
    s_mov_b32 m0, {L_WQ}
    s_waitcnt lgkmcnt(0)
    global_load_dwordx4 v[16:19], v4, s[4:5]
    global_load_dwordx4 v[20:23], v4, s[4:5] offset:16
    global_load_dwordx4 v[24:27], v4, s[4:5] offset:32
    global_load_dwordx2 v[28:29], v4, s[4:5] offset:48
    global_load_dwordx2 v[8:9], v7, s[26:27] sc1
    s_mov_b32 s35, 14
    L_wqld:
    global_load_lds_dwordx4 v5, s[10:11]{WQ}
    v_add_u32 v5, {32*8192}, v5
    s_add_u32 m0, m0, 1024
    s_sub_u32 s35, s35, 1
    s_cmp_lg_u32 s35, 0
    s_cbranch_scc1 L_wqld
    """)
    a(f"""
    v_mov_b32 v12, -1
    v_mov_b32 v13, -1
    v_mov_b32 v14, -1
    v_mov_b32 v15, -1
    s_lshl_b32 s34, s29, 2
    s_add_u32 s34, s34, s31
    s_lshl_b32 s35, s34, 3
    s_add_u32 s35, s35, s32
    s_lshl_b32 s35, s35, 10
    s_add_u32 s35, s35, {WS_O}
    v_lshl_add_u32 v6, v1, 4, s35
    global_store_dwordx4 v6, v[12:15], s[26:27] sc1
    s_lshl_b32 s35, s34, 7
    s_lshl_b32 s38, s32, 3
    s_add_u32 s35, s35, s38
    s_add_u32 s35, s35, {WS_ST}
    v_and_b32 v6, 1, v1
    v_lshl_add_u32 v6, v6, 6, s35
    global_store_dwordx2 v6, v[12:13], s[26:27] sc1
    s_cmp_lt_u32 s30, 14
    s_cbranch_scc0 L_q_nowo
    s_lshr_b32 s35, s30, 1
    s_lshl_b32 s35, s35, 3
    s_add_u32 s35, s35, s29
    s_lshl_b32 s35, s35, 8
    s_and_b32 s38, s30, 1
    s_lshl_b32 s38, s38, 7
    s_add_u32 s35, s35, s38
    s_add_u32 s35, s35, {WS_HP}
    v_mul_u32_u24 v6, {7*8*256}, v3
    v_lshl_add_u32 v6, v2, 3, v6
    v_add_u32 v6, s35, v6
    global_store_dwordx2 v6, v[12:13], s[26:27] sc1
    s_branch L_q_ln
    L_q_nowo:
    s_cmp_lt_u32 s30, 21
    s_cbranch_scc0 L_q_ln
    s_mul_i32 s33, s29, 7
    s_add_u32 s33, s33, s30
    s_sub_u32 s33, s33, 14
    s_mul_i32 s35, s33, 7168
    s_add_u32 s35, s35, {WS_DP + 3072}
    v_lshl_add_u32 v6, v1, 4, s35
    """)
    for i in range(7):
        a(f"global_store_dwordx4 v6, v[12:15], s[26:27] offset:{i*1024-3072} sc1")
    a("L_q_ln:")
    a("s_waitcnt vmcnt(17)")
    stamp(1)
    F = 32
    for i in range(14):
        a(f"v_lshlrev_b32 v{F+2*i}, 16, v{16+i}\nv_and_b32 v{F+2*i+1}, 0xffff0000, v{16+i}")
    a(f"v_pk_add_f32 v[60:61], v[{F}:{F+1}], v[{F+2}:{F+3}]")
    a(f"v_pk_add_f32 v[62:63], v[{F+4}:{F+5}], v[{F+6}:{F+7}]")
    for i in range(4, 14):
        d = 60 + 2 * (i & 1)
        a(f"v_pk_add_f32 v[{d}:{d+1}], v[{d}:{d+1}], v[{F+2*i}:{F+2*i+1}]")
    a("v_pk_add_f32 v[60:61], v[60:61], v[62:63]\nv_add_f32 v60, v60, v61")
    ROW = ["quad_perm:[1,0,3,2]", "quad_perm:[2,3,0,1]", "row_half_mirror", "row_mirror"]
    v = row_reduce("v_add_f32", 60, 61, ROW)
    a(f"v_mul_f32 v64, {f32(1/448)}, v{v}")
    for i in range(14):
        d = 60 + 2 * (i & 1); t = 66 + 2 * (i & 1)
        a(f"v_pk_add_f32 v[{t}:{t+1}], v[{F+2*i}:{F+2*i+1}], v[64:65] op_sel_hi:[1,0] neg_lo:[0,1] neg_hi:[0,1]")
        if i < 2: a(f"v_pk_mul_f32 v[{d}:{d+1}], v[{t}:{t+1}], v[{t}:{t+1}]")
        else: a(f"v_pk_fma_f32 v[{d}:{d+1}], v[{t}:{t+1}], v[{t}:{t+1}], v[{d}:{d+1}]")
    a("v_pk_add_f32 v[60:61], v[60:61], v[62:63]\nv_add_f32 v60, v60, v61")
    v = row_reduce("v_add_f32", 60, 61, ROW)
    a(f"v_mul_f32 v62, {f32(1/448)}, v{v}")
    rbf(62, 62)
    a(f"v_add_f32 v62, {f32(1e-5)}, v62")
    rbf(62, 62)
    a("v_sqrt_f32 v62, v62")
    rbf(62, 62)
    a("v_rcp_f32 v62, v62")
    rbf(64, 64)
    for i in range(14):
        p = F + 2 * i
        a(f"v_pk_add_f32 v[{p}:{p+1}], v[{p}:{p+1}], v[64:65] op_sel_hi:[1,0] neg_lo:[0,1] neg_hi:[0,1]")
    for i in range(14):
        p = F + 2 * i
        a(f"v_cvt_pk_bf16_f32 v{16+i}, v{p}, v{p+1}")
    for i in range(14):
        p = F + 2 * i
        a(f"v_lshlrev_b32 v{p}, 16, v{16+i}\nv_and_b32 v{p+1}, 0xffff0000, v{16+i}")
    for i in range(14):
        p = F + 2 * i
        a(f"v_pk_mul_f32 v[{p}:{p+1}], v[{p}:{p+1}], v[62:63] op_sel_hi:[1,0]")
    for i in range(14):
        p = F + 2 * i
        a(f"v_cvt_pk_bf16_f32 v{16+i}, v{p}, v{p+1}")
    for i in range(7):
        a(f"ds_write_b64 v4, v[{16+2*i}:{17+2*i}] offset:{L_XN + 8*i}")
    a(f"""
    v_and_b32 v6, 3, v1
    v_mul_u32_u24 v10, 896, v6
    v_lshl_add_u32 v10, v3, 4, v10
    v_bfe_u32 v11, v1, 2, 2
    v_lshl_add_u32 v11, v3, 3, v11
    v_lshlrev_b32 v11, 5, v11
    v_lshl_add_u32 v11, v6, 3, v11
    s_waitcnt lgkmcnt(0)
    """)
    XF = 72
    for t in range(14):
        a(f"ds_read_b128 v[{XF+4*t}:{XF+4*t+3}], v10 offset:{L_XN + 64*t}")
    a("s_waitcnt vmcnt(0)")
    stamp(2)
    WF = 16
    for t in range(14):
        for i in range(2):
            a(f"ds_read_b64_tr_b16 v[{WF+4*t+2*i}:{WF+4*t+2*i+1}], v11 offset:{L_WQ + 1024*t + 128*i}")
    a(f"""
    v_add_co_u32 v8, vcc, 1, v8
    v_addc_co_u32 v9, vcc, 0, v9, vcc
    s_lshl_b32 s35, s2, 3
    s_add_u32 s35, s35, {WS_FLAGS}
    v_mov_b32 v6, s35
    v_mov_b32 v7, {L_TAG}
    s_mov_b64 exec, 1
    global_store_dwordx2 v6, v[8:9], s[26:27] sc1
    ds_write_b64 v7, v[8:9]
    s_mov_b64 exec, -1
    s_waitcnt lgkmcnt(0)
    """)
    for t in range(14):
        c = "0" if t == 0 else "v[12:15]"
        a(f"v_mfma_f32_16x16x32_bf16 v[12:15], v[{WF+4*t}:{WF+4*t+3}], v[{XF+4*t}:{XF+4*t+3}], {c}")
    a(f"""
    s_lshl_b32 s34, s29, 13
    s_lshl_b32 s35, s30, 6
    s_add_u32 s35, s35, s34
    s_add_u32 s35, s35, {WS_Q}
    v_lshlrev_b32 v6, 11, v2
    v_lshl_add_u32 v6, v3, 4, v6
    v_add_u32 v6, s35, v6
    v_mov_b32 v17, v8
    v_mov_b32 v19, v9
    s_lshl_b32 s35, s31, 11
    s_add_u32 s35, s35, s34
    s_add_u32 s35, s35, {WS_Q}
    v_lshl_add_u32 v7, v1, 5, s35
    v_lshlrev_b32 v10, 4, v1
    v_cvt_pk_bf16_f32 v16, v12, v13
    v_cvt_pk_bf16_f32 v18, v14, v15
    s_mov_b32 s36, 0x000f000f
    s_mov_b32 s37, 0x000f000f
    s_mov_b64 exec, s[36:37]
    global_store_dwordx4 v6, v[16:19], s[26:27] sc1
    s_mov_b64 exec, -1
    """)
    stamp(3)
    spin_head("L_qpoll", "L_qdone")
    a("""
    global_load_dwordx4 v[20:23], v7, s[26:27] sc1
    global_load_dwordx4 v[24:27], v7, s[26:27] offset:16 sc1
    s_waitcnt vmcnt(0)
    v_xor_b32 v28, v21, v8
    v_xor_b32 v29, v23, v9
    v_xor_b32 v30, v25, v8
    v_xor_b32 v31, v27, v9
    v_or3_b32 v28, v28, v29, v30
    v_or_b32 v28, v28, v31
    v_cmp_ne_u32 vcc, 0, v28
    s_cbranch_vccnz L_qpoll
    L_qdone:
    ds_write2_b32 v10, v20, v22 offset0:0 offset1:1
    ds_write2_b32 v10, v24, v26 offset0:2 offset1:3
    s_waitcnt lgkmcnt(0)
    """)
    stamp(4)
    a("s_barrier")
    flush_stamps([0, 1, 2, 3, 4])
    a("s_endpgm")

    a("L_attn:")
    a(f"""
    v_lshrrev_b32 v6, 3, v2
    v_lshlrev_b32 v6, 9, v6
    v_lshl_add_u32 v6, v3, 4, v6
    v_and_b32 v7, 1, v2
    v_cmp_eq_u32 vcc, 1, v7
    v_mov_b32 v12, 0xffff
    v_mov_b32 v13, 0xffff0000
    v_cndmask_b32 v7, v12, v13, vcc
    v_bfe_u32 v12, v2, 1, 2
    """)
    for r in range(4):
        a(f"v_cmp_eq_u32 vcc, {r}, v12\nv_cndmask_b32 v{8+r}, 0, v7, vcc")
    a(f"""
    s_mov_b32 s48, 0x05040100
    s_mov_b32 s49, 0x07060302
    s_mov_b32 s53, {f32(C_SM)}
    s_mov_b32 s54, 0xfffffffe
    s_mov_b32 s40, 0x11111111
    s_mov_b32 s41, 0x11111111
    s_lshl_b64 s[42:43], s[40:41], 1
    s_lshl_b64 s[44:45], s[40:41], 2
    s_lshl_b64 s[46:47], s[40:41], 3
    """)
    stamp(5)
    a("s_barrier")
    for i in range(8):
        a(f"ds_read_b128 v[{80+4*i}:{83+4*i}], v6 offset:{L_Q + 64*i}")
    a("s_waitcnt vmcnt(8) lgkmcnt(0)")
    for i in range(8):
        c = "0" if i == 0 else "v[12:15]"
        a(f"v_mfma_f32_16x16x32_bf16 v[12:15], v[{16+4*i}:{19+4*i}], v[{80+4*i}:{83+4*i}], {c}")
    a(f"""
    s_lshl_b32 s35, s28, 3
    v_lshl_add_u32 v6, v2, 3, s35
    v_lshlrev_b32 v7, 3, v2
    v_cvt_pk_bf16_f32 v104, v12, v13
    v_cvt_pk_bf16_f32 v105, v14, v15
    v_lshlrev_b32 v12, 16, v104
    v_and_b32 v13, 0xffff0000, v104
    v_lshlrev_b32 v14, 16, v105
    v_and_b32 v15, 0xffff0000, v105
    v_max3_f32 v104, v12, v13, v14
    v_max_f32 v104, v104, v15
    """)
    swap_reduce("v_max_f32", 104, 106)
    for r in range(4):
        a(f"v_sub_f32 v{12+r}, v{12+r}, v104")
    for r in range(4):
        a(f"v_mul_f32 v{12+r}, s53, v{12+r}")
    for r in range(4):
        a(f"v_exp_f32 v{12+r}, v{12+r}")
    a("v_add_f32 v105, v12, v13\nv_add_f32 v106, v14, v15\nv_add_f32 v105, v105, v106")
    swap_reduce("v_add_f32", 105, 106)
    a(f"""
    s_mov_b64 exec, 0x101
    ds_write_b64 v6, v[104:105] offset:{L_MX}
    s_mov_b64 exec, -1
    s_waitcnt lgkmcnt(0)
    s_barrier
    ds_read_b64 v[106:107], v7 offset:{L_MX}
    s_waitcnt lgkmcnt(0)
    """)
    R8 = ["quad_perm:[1,0,3,2]", "quad_perm:[2,3,0,1]", "row_half_mirror"]
    a(f"v_max_f32_dpp v108, v106, v106 {R8[0]} {DPP}")
    a(f"v_max_f32_dpp v109, v108, v108 {R8[1]} {DPP}")
    a(f"v_max_f32_dpp v108, v109, v109 {R8[2]} {DPP}")
    a(f"""
    v_sub_f32 v104, v104, v108
    v_sub_f32 v106, v106, v108
    v_mul_f32 v104, s53, v104
    v_mul_f32 v106, s53, v106
    v_exp_f32 v104, v104
    v_exp_f32 v106, v106
    s_cmp_lg_u32 s28, 0
    s_cbranch_scc1 L_nostat
    v_mul_f32 v106, v106, v107
    v_add_f32_dpp v107, v106, v106 {R8[0]} {DPP}
    v_add_f32_dpp v106, v107, v107 {R8[1]} {DPP}
    v_add_f32_dpp v109, v106, v106 {R8[2]} {DPP}
    s_lshl_b32 s34, s29, 2
    s_add_u32 s34, s34, s31
    s_lshl_b32 s35, s34, 7
    s_lshl_b32 s38, s32, 3
    s_add_u32 s35, s35, s38
    s_add_u32 s35, s35, {WS_ST}
    v_add_u32 v7, s35, v7
    v_min_u32 v109, s54, v109
    s_mov_b64 exec, 0x101
    global_store_dwordx2 v7, v[108:109], s[26:27] sc1
    s_mov_b64 exec, -1
    L_nostat:
    """)
    for r in range(4):
        a(f"v_mul_f32 v{12+r}, v{12+r}, v104")
    for r in range(4):
        a(f"v_cvt_pk_bf16_f32 v{12+r}, v{12+r}, v{12+r}")
    for T in range(4):
        for r in range(4):
            a(f"v_and_b32 v{80+4*T+r}, v{12+T}, v{8+r}")
    stamp(6)
    a(f"""
    v_lshrrev_b32 v6, 1, v3
    v_lshlrev_b32 v6, 10, v6
    v_and_b32 v7, 1, v3
    v_lshl_add_u32 v6, v7, 8, v6
    v_lshl_add_u32 v6, v2, 4, v6
    s_lshl_b32 s35, s28, 11
    v_add_u32 v6, s35, v6
    """)
    def pv(extra):
        for T in range(4):
            for dh in range(2):
                k = 2 * T + dh
                a(f"s_waitcnt vmcnt({min(63, extra + 7 - k)})")
                c = "0" if T == 0 else f"v[{96+4*dh}:{99+4*dh}]"
                a(f"v_mfma_f32_16x16x32_bf16 v[{96+4*dh}:{99+4*dh}], v[{80+4*T}:{83+4*T}], v[{48+4*k}:{51+4*k}], {c}")
    a(f"""
    s_cmp_lt_u32 s30, 14
    s_cbranch_scc1 L_pre_wo
    s_cmp_lt_u32 s30, 21
    s_cbranch_scc0 L_pv0
    s_cmp_eq_u32 s28, 7
    s_cbranch_scc1 L_pv0
    s_mul_i32 s33, s29, 7
    s_add_u32 s33, s33, s30
    s_sub_u32 s33, s33, 14
    s_mul_i32 s34, s28, {64*3584}
    s_lshl_b32 s35, s33, 6
    s_add_u32 s34, s34, s35
    v_mul_u32_u24 v4, {16*3584}, v3
    v_lshl_add_u32 v4, v2, 2, v4
    v_add_u32 v4, s34, v4
    v_mov_b32 v5, v4
    """)
    for p in range(8):
        a(f"global_load_dword v{112+2*p}, v5, s[16:17]{WT}\nglobal_load_dword v{113+2*p}, v5, s[16:17] offset:3584{WT}")
        if p < 7: a("v_add_u32 v5, 7168, v5")
    a("s_branch L_pv16")
    a(f"""
    L_pre_wo:
    s_lshl_b32 s34, s29, 3
    s_add_u32 s34, s34, s28
    s_mul_i32 s34, s34, {64*896}
    s_lshl_b32 s35, s30, 6
    s_add_u32 s34, s34, s35
    v_mul_u32_u24 v4, {16*896}, v3
    v_lshl_add_u32 v4, v2, 2, v4
    v_add_u32 v4, s34, v4
    """)
    for u in range(4):
        for q in range(4):
            a(f"global_load_dword v{112+4*u+q}, v4, s[12:13] offset:{q*896}{WT}")
        if u < 3: a("v_add_u32 v4, 3584, v4")
    a("L_pv16:")
    pv(16)
    a("s_branch L_pvdone\nL_pv0:")
    pv(0)
    a("L_pvdone:")
    stamp(7)
    a(f"""
    s_lshr_b32 s35, s28, 1
    s_lshl_b32 s35, s35, 9
    s_and_b32 s38, s28, 1
    s_lshl_b32 s38, s38, 7
    s_add_u32 s35, s35, s38
    v_bfe_u32 v7, v1, 1, 1
    v_lshlrev_b32 v7, 8, v7
    v_bfe_u32 v12, v1, 2, 3
    v_lshl_add_u32 v7, v12, 4, v7
    v_and_b32 v12, 1, v1
    v_lshl_add_u32 v7, v12, 3, v7
    v_add_u32 v7, s35, v7
    ds_write_b128 v6, v[96:99] offset:{L_RED}
    ds_write_b128 v6, v[100:103] offset:{L_RED + 512}
    s_lshl_b32 s34, s29, 2
    s_add_u32 s34, s34, s31
    s_lshl_b32 s35, s34, 3
    s_add_u32 s35, s35, s32
    s_lshl_b32 s35, s35, 10
    s_lshl_b32 s38, s28, 7
    s_add_u32 s35, s35, s38
    s_add_u32 s35, s35, {WS_O}
    v_lshl_add_u32 v12, v1, 2, s35
    s_waitcnt lgkmcnt(0)
    s_barrier
    """)
    for s_ in range(8):
        a(f"ds_read_b64 v[{80+2*s_}:{81+2*s_}], v7 offset:{L_RED + 2048*s_}")
    a("s_waitcnt lgkmcnt(0)")
    for x, y in ((80, 82), (84, 86), (88, 90), (92, 94), (80, 84), (88, 92), (80, 88)):
        a(f"v_pk_add_f32 v[{x}:{x+1}], v[{x}:{x+1}], v[{y}:{y+1}]")
    a(f"""
    v_cvt_pk_bf16_f32 v80, v80, v81
    v_min_u32 v80, s54, v80
    s_mov_b32 exec_hi, 0
    global_store_dword v12, v80, s[26:27] sc1
    s_mov_b64 exec, -1
    """)
    stamp(8)
    a(f"""
    s_cmp_lt_u32 s30, 14
    s_cbranch_scc1 L_wo
    s_cmp_lt_u32 s30, 21
    s_cbranch_scc1 L_ffn
    """)
    flush_stamps([5, 6, 7, 8], wave=0)
    a("s_endpgm")

    a("L_wo:")
    a(f"""
    v_bfe_u32 v8, v1, 2, 2
    v_and_b32 v9, 3, v1
    s_lshl_b32 s34, s29, 9
    s_lshr_b32 s35, s28, 2
    s_lshl_b32 s35, s35, 6
    s_add_u32 s34, s34, s35
    s_add_u32 s34, s34, {WS_ST}
    v_lshl_add_u32 v4, v8, 7, s34
    s_lshl_b32 s34, s29, 15
    s_lshl_b32 s35, s28, 7
    s_add_u32 s34, s34, s35
    s_add_u32 s34, s34, {WS_O + 4096}
    v_lshlrev_b32 v5, 13, v8
    v_lshl_add_u32 v5, v3, 5, v5
    v_lshl_add_u32 v5, v9, 3, v5
    v_add_u32 v5, s34, v5
    """)
    spin_head("L_stpoll", "L_stdone")
    for i in range(4):
        a(f"global_load_dwordx4 v[{80+4*i}:{83+4*i}], v4, s[26:27] offset:{16*i} sc1")
    a("s_waitcnt vmcnt(0)")
    sent_check(range(80, 96), 10, "L_stpoll")
    a("L_stdone:")
    def oloads():
        for s_ in range(8):
            a(f"global_load_dwordx2 v[{64+2*s_}:{65+2*s_}], v5, s[26:27] offset:{1024*s_-4096} sc1")
    oloads()
    a("""
    v_max3_f32 v10, v80, v82, v84
    v_max3_f32 v11, v86, v88, v90
    v_max3_f32 v10, v10, v92, v94
    v_max_f32 v10, v10, v11
    """)
    for s_ in range(8): a(f"v_sub_f32 v{80+2*s_}, v{80+2*s_}, v10")
    for s_ in range(8): a(f"v_mul_f32 v{80+2*s_}, s53, v{80+2*s_}")
    for s_ in range(8): a(f"v_exp_f32 v{80+2*s_}, v{80+2*s_}")
    a("v_mul_f32 v10, v80, v81\nv_mul_f32 v11, v82, v83")
    for s_ in range(2, 8): a(f"v_fmac_f32 v{10+(s_&1)}, v{80+2*s_}, v{81+2*s_}")
    a("v_add_f32 v10, v10, v11\nv_rcp_f32 v10, v10")
    for s_ in range(8): a(f"v_mul_f32 v{80+2*s_}, v{80+2*s_}, v10")
    for t in range(2):
        for par in range(2):
            for u in range(4):
                a(f"v_perm_b32 v{16+8*t+4*par+u}, v{112+4*u+2*t+1}, v{112+4*u+2*t}, s{48+par}")
    a(f"""
    s_lshl_b32 s35, s28, 9
    v_lshl_add_u32 v6, v1, 3, s35
    v_lshlrev_b32 v7, 3, v1
    s_mov_b32 s52, 0
    s_branch L_ochk
    L_opoll:
    s_add_u32 s52, s52, 1
    s_cmp_gt_u32 s52, {spin}
    s_cbranch_scc1 L_odone
    """)
    oloads()
    a("L_ochk:\ns_waitcnt vmcnt(0)")
    sent_check(range(64, 80), 10, "L_opoll")
    a("L_odone:")
    stamp(9)
    for s_ in range(8):
        for d in range(2):
            t = 32 + 4 * s_ + 2 * d
            a(f"v_lshlrev_b32 v{t}, 16, v{64+2*s_+d}\nv_and_b32 v{t+1}, 0xffff0000, v{64+2*s_+d}")
        for d in range(2):
            t = 32 + 4 * s_ + 2 * d
            acc = 96 + 4 * (s_ & 1) + 2 * d
            if s_ < 2:
                a(f"v_pk_mul_f32 v[{acc}:{acc+1}], v[{t}:{t+1}], v[{80+2*s_}:{81+2*s_}] op_sel_hi:[1,0]")
            else:
                a(f"v_pk_fma_f32 v[{acc}:{acc+1}], v[{t}:{t+1}], v[{80+2*s_}:{81+2*s_}], v[{acc}:{acc+1}] op_sel_hi:[1,0,1]")
    a("""
    v_pk_add_f32 v[96:97], v[96:97], v[100:101]
    v_pk_add_f32 v[98:99], v[98:99], v[102:103]
    v_cvt_pk_bf16_f32 v10, v96, v97
    v_cvt_pk_bf16_f32 v11, v98, v99
    """)
    for t in range(2):
        for r in range(4):
            a(f"v_cndmask_b32 v{32+4*t+r}, 0, v{10+t}, s[{40+2*r}:{41+2*r}]")
    for t in range(2):
        for par in range(2):
            c = "0" if t == 0 else f"v[{40+4*par}:{43+4*par}]"
            a(f"v_mfma_f32_16x16x32_bf16 v[{40+4*par}:{43+4*par}], v[{32+4*t}:{35+4*t}], v[{16+8*t+4*par}:{19+8*t+4*par}], {c}")
    a(f"""
    v_add_f32 v40, v40, v41
    v_add_f32 v42, v42, v43
    v_add_f32 v44, v44, v45
    v_add_f32 v46, v46, v47
    v_add_f32 v40, v40, v42
    v_add_f32 v41, v44, v46
    ds_write_b64 v6, v[40:41] offset:{L_RED2}
    s_waitcnt lgkmcnt(0)
    s_barrier
    s_cmp_lg_u32 s28, 0
    s_cbranch_scc1 L_end
    """)
    for s_ in range(8):
        a(f"ds_read_b64 v[{80+2*s_}:{81+2*s_}], v7 offset:{L_RED2 + 512*s_}")
    a(f"""
    s_lshr_b32 s35, s30, 1
    s_lshl_b32 s35, s35, 3
    s_add_u32 s35, s35, s29
    s_lshl_b32 s35, s35, 8
    s_and_b32 s38, s30, 1
    s_lshl_b32 s38, s38, 7
    s_add_u32 s35, s35, s38
    s_add_u32 s35, s35, {WS_HP}
    v_mul_u32_u24 v6, {7*8*256}, v3
    v_lshl_add_u32 v6, v2, 3, v6
    v_add_u32 v6, s35, v6
    s_waitcnt lgkmcnt(0)
    """)
    for x, y in ((80, 82), (84, 86), (88, 90), (92, 94), (80, 84), (88, 92), (80, 88)):
        a(f"v_pk_add_f32 v[{x}:{x+1}], v[{x}:{x+1}], v[{y}:{y+1}]")
    a("""
    v_min_u32 v80, s54, v80
    v_min_u32 v81, s54, v81
    global_store_dwordx2 v6, v[80:81], s[26:27] sc1
    """)
    stamp(10)
    flush_stamps([5, 6, 7, 8, 9, 10])
    a("s_endpgm")

    a("L_ffn:")
    a(f"""
    s_mul_i32 s33, s29, 7
    s_add_u32 s33, s33, s30
    s_sub_u32 s33, s33, 14
    v_mov_b32 v7, {L_TAG}
    ds_read_b64 v[12:13], v7
    v_lshlrev_b32 v6, 5, v1
    s_cmp_eq_u32 s28, 7
    s_cbranch_scc1 L_flags
    """)
    for p in range(8):
        a(f"global_load_dword v{128+2*p}, v4, s[18:19]{WT}\nglobal_load_dword v{129+2*p}, v4, s[18:19] offset:3584{WT}")
        if p < 7: a("v_add_u32 v4, 7168, v4")
    a(f"""
    v_bfe_u32 v8, v1, 2, 2
    v_and_b32 v9, 3, v1
    v_mul_u32_u24 v5, 896, v8
    v_lshl_add_u32 v5, v3, 5, v5
    v_lshl_add_u32 v5, v9, 3, v5
    s_lshl_b32 s35, s28, 7
    v_add_u32 v5, s35, v5
    global_load_dwordx2 v[14:15], v5, s[4:5]
    s_mul_i32 s34, s33, {32*896}
    s_add_u32 s34, s34, s35
    v_mul_u32_u24 v4, {8*896}, v3
    v_lshl_add_u32 v4, v2, 3, v4
    v_add_u32 v4, s34, v4
    """)
    for j in range(8):
        if j == 4: a("v_add_u32 v4, 3584, v4")
        a(f"global_load_dwordx2 v[{144+2*j}:{145+2*j}], v4, s[20:21] offset:{(j&3)*896}{WT}")
    a("L_flags:")
    spin_head("L_flpoll", "L_fldone")
    a(f"""
    global_load_dwordx4 v[64:67], v6, s[26:27] offset:{WS_FLAGS - 4096} sc1
    global_load_dwordx4 v[68:71], v6, s[26:27] offset:{WS_FLAGS - 4096 + 16} sc1
    """.replace(f"offset:{WS_FLAGS - 4096} ", "").replace(f"offset:{WS_FLAGS - 4096 + 16}", "offset:16"))
    a("s_waitcnt vmcnt(0) lgkmcnt(0)")
    for i in range(8):
        a(f"v_xor_b32 v{64+i}, v{64+i}, v{12+(i&1)}")
    a("""
    v_or3_b32 v64, v64, v65, v66
    v_or3_b32 v67, v67, v68, v69
    v_or3_b32 v64, v64, v70, v71
    v_or_b32 v64, v64, v67
    v_cmp_ne_u32 vcc, 0, v64
    s_cbranch_vccnz L_flpoll
    L_fldone:
    s_cmp_eq_u32 s28, 7
    s_cbranch_scc1 L_final
    """)
    a(f"""
    v_mul_u32_u24 v6, {7*8*256}, v8
    v_lshl_add_u32 v6, v3, 6, v6
    v_lshl_add_u32 v6, v9, 4, v6
    s_lshl_b32 s35, s28, 11
    s_add_u32 s35, s35, {WS_HP}
    v_add_u32 v6, s35, v6
    """)
    def hloads():
        for ks in range(8):
            a(f"global_load_dwordx4 v[{64+4*ks}:{67+4*ks}], v6, s[26:27] offset:{256*ks} sc1")
    hloads()
    for mt in range(2):
        for t in range(2):
            for par in range(2):
                for u in range(4):
                    rr = 112 + 16 * mt + 4 * u + 2 * t
                    a(f"v_perm_b32 v{16+16*mt+8*t+4*par+u}, v{rr+1}, v{rr}, s{48+par}")
    for e in range(4):
        for jj in range(4):
            a(f"v_perm_b32 v{48+4*e+jj}, v{144+2*(2*jj+1)+(e>>1)}, v{144+2*(2*jj)+(e>>1)}, s{48+(e&1)}")
    a(f"""
    v_lshlrev_b32 v104, 16, v14
    v_and_b32 v105, 0xffff0000, v14
    v_lshlrev_b32 v106, 16, v15
    v_and_b32 v107, 0xffff0000, v15
    s_lshl_b32 s35, s28, 3
    v_lshl_add_u32 v10, v8, 6, s35
    v_lshlrev_b32 v11, 6, v8
    s_lshl_b32 s35, s28, 10
    v_lshl_add_u32 v12, v1, 4, s35
    v_lshl_add_u32 v13, v3, 2, v9
    v_lshl_add_u32 v13, v8, 4, v13
    v_lshlrev_b32 v13, 4, v13
    v_mul_u32_u24 v4, {14*56*128}, v3
    v_lshrrev_b32 v7, 3, v2
    v_mul_u32_u24 v7, {56*128}, v7
    v_add_u32 v4, v4, v7
    v_and_b32 v7, 7, v2
    v_lshl_add_u32 v4, v7, 4, v4
    s_mul_i32 s35, s28, {2*56*128}
    s_lshl_b32 s38, s33, 7
    s_add_u32 s35, s35, s38
    s_add_u32 s35, s35, {WS_DP}
    v_add_u32 v4, s35, v4
    s_mov_b32 s52, 0
    s_branch L_hchk
    L_hpoll:
    s_add_u32 s52, s52, 1
    s_cmp_gt_u32 s52, {spin}
    s_cbranch_scc1 L_hdone
    """)
    hloads()
    a("L_hchk:\ns_waitcnt vmcnt(0)")
    sent_check(range(64, 96), 7, "L_hpoll")
    a("L_hdone:")
    stamp(11)
    for x, y in ((64, 68), (72, 76), (80, 84), (88, 92), (64, 72), (80, 88), (64, 80)):
        a(f"v_pk_add_f32 v[{x}:{x+1}], v[{x}:{x+1}], v[{y}:{y+1}]\nv_pk_add_f32 v[{x+2}:{x+3}], v[{x+2}:{x+3}], v[{y+2}:{y+3}]")
    a(f"""
    v_cvt_pk_bf16_f32 v68, v64, v65
    v_cvt_pk_bf16_f32 v69, v66, v67
    v_lshlrev_b32 v64, 16, v68
    v_and_b32 v65, 0xffff0000, v68
    v_lshlrev_b32 v66, 16, v69
    v_and_b32 v67, 0xffff0000, v69
    v_pk_add_f32 v[64:65], v[64:65], v[104:105]
    v_pk_add_f32 v[66:67], v[66:67], v[106:107]
    v_cvt_pk_bf16_f32 v68, v64, v65
    v_cvt_pk_bf16_f32 v69, v66, v67
    v_lshlrev_b32 v64, 16, v68
    v_and_b32 v65, 0xffff0000, v68
    v_lshlrev_b32 v66, 16, v69
    v_and_b32 v67, 0xffff0000, v69
    ds_write_b64 v5, v[68:69] offset:{L_H}
    v_pk_add_f32 v[70:71], v[64:65], v[66:67]
    v_add_f32 v70, v70, v71
    v_add_f32_dpp v71, v70, v70 quad_perm:[1,0,3,2] {DPP}
    v_add_f32_dpp v70, v71, v71 quad_perm:[2,3,0,1] {DPP}
    """)
    swap_reduce("v_add_f32", 70, 72)
    a(f"""
    v_mul_f32 v70, {f32(1/64)}, v70
    v_pk_add_f32 v[72:73], v[64:65], v[70:71] op_sel_hi:[1,0] neg_lo:[0,1] neg_hi:[0,1]
    v_pk_add_f32 v[74:75], v[66:67], v[70:71] op_sel_hi:[1,0] neg_lo:[0,1] neg_hi:[0,1]
    v_pk_mul_f32 v[72:73], v[72:73], v[72:73]
    v_pk_fma_f32 v[72:73], v[74:75], v[74:75], v[72:73]
    v_add_f32 v72, v72, v73
    v_add_f32_dpp v73, v72, v72 quad_perm:[1,0,3,2] {DPP}
    v_add_f32_dpp v71, v73, v73 quad_perm:[2,3,0,1] {DPP}
    """)
    swap_reduce("v_add_f32", 71, 72)
    a(f"""
    s_mov_b64 exec, 0x1111
    ds_write_b64 v10, v[70:71] offset:{L_LNS}
    s_mov_b64 exec, -1
    s_waitcnt lgkmcnt(0)
    s_barrier
    ds_read_b128 v[72:75], v11 offset:{L_LNS}
    ds_read_b128 v[76:79], v11 offset:{L_LNS+16}
    ds_read_b128 v[80:83], v11 offset:{L_LNS+32}
    ds_read_b64 v[84:85], v11 offset:{L_LNS+48}
    s_waitcnt lgkmcnt(0)
    v_pk_add_f32 v[86:87], v[72:73], v[74:75]
    v_pk_add_f32 v[88:89], v[76:77], v[78:79]
    v_pk_add_f32 v[90:91], v[80:81], v[82:83]
    v_pk_add_f32 v[86:87], v[86:87], v[84:85]
    v_pk_add_f32 v[88:89], v[88:89], v[90:91]
    v_pk_add_f32 v[86:87], v[86:87], v[88:89]
    v_mul_f32 v86, {f32(1/7)}, v86
    """)
    for i in range(7): a(f"v_sub_f32 v{72+2*i}, v{72+2*i}, v86")
    a("v_mul_f32 v88, v72, v72\nv_mul_f32 v89, v74, v74")
    for i in range(2, 7): a(f"v_fmac_f32 v{88+(i&1)}, v{72+2*i}, v{72+2*i}")
    a(f"""
    v_add_f32 v88, v88, v89
    v_fmac_f32 v87, {f32(64.0)}, v88
    v_mul_f32 v88, {f32(1/448)}, v87
    """)
    rbf(86, 86)
    rbf(88, 88)
    a(f"v_add_f32 v88, {f32(1e-5)}, v88")
    a(f"""
    v_pk_add_f32 v[64:65], v[64:65], v[86:87] op_sel_hi:[1,0] neg_lo:[0,1] neg_hi:[0,1]
    v_pk_add_f32 v[66:67], v[66:67], v[86:87] op_sel_hi:[1,0] neg_lo:[0,1] neg_hi:[0,1]
    """)
    rbf(88, 88)
    a("""
    v_sqrt_f32 v88, v88
    v_cvt_pk_bf16_f32 v68, v64, v65
    v_cvt_pk_bf16_f32 v69, v66, v67
    """)
    rbf(88, 88)
    a("""
    v_rcp_f32 v88, v88
    v_lshlrev_b32 v64, 16, v68
    v_and_b32 v65, 0xffff0000, v68
    v_lshlrev_b32 v66, 16, v69
    v_and_b32 v67, 0xffff0000, v69
    v_pk_mul_f32 v[64:65], v[64:65], v[88:89] op_sel_hi:[1,0]
    v_pk_mul_f32 v[66:67], v[66:67], v[88:89] op_sel_hi:[1,0]
    v_cvt_pk_bf16_f32 v68, v64, v65
    v_cvt_pk_bf16_f32 v69, v66, v67
    """)
    for t in range(2):
        for r in range(4):
            a(f"v_cndmask_b32 v{72+4*t+r}, 0, v{68+t}, s[{40+2*r}:{41+2*r}]")
    for t in range(2):
        for mt in range(2):
            for par in range(2):
                d = 80 + 8 * mt + 4 * par
                c = "0" if t == 0 else f"v[{d}:{d+3}]"
                bq = 16 + 16 * mt + 8 * t + 4 * par
                a(f"v_mfma_f32_16x16x32_bf16 v[{d}:{d+3}], v[{72+4*t}:{75+4*t}], v[{bq}:{bq+3}], {c}")
    for q in range(4):
        d = 80 + 4 * q
        a(f"v_pk_add_f32 v[{d}:{d+1}], v[{d}:{d+1}], v[{d+2}:{d+3}]")
    for q in range(4):
        d = 80 + 4 * q
        a(f"v_add_f32 v{96+q}, v{d}, v{d+1}")
    a(f"""
    ds_write_b128 v12, v[96:99] offset:{L_RED2}
    s_waitcnt lgkmcnt(0)
    s_barrier
    """)
    for w in range(7):
        a(f"ds_read_b128 v[{64+4*w}:{67+4*w}], v13 offset:{L_RED2 + 1024*w}")
    a("s_waitcnt lgkmcnt(0)")
    for x, y in ((64, 68), (72, 76), (80, 84), (64, 72), (80, 88), (64, 80)):
        a(f"v_pk_add_f32 v[{x}:{x+1}], v[{x}:{x+1}], v[{y}:{y+1}]\nv_pk_add_f32 v[{x+2}:{x+3}], v[{x+2}:{x+3}], v[{y+2}:{y+3}]")
    a(f"""
    v_cvt_pk_bf16_f32 v68, v64, v65
    v_cvt_pk_bf16_f32 v69, v66, v67
    v_lshlrev_b32 v64, 16, v68
    v_and_b32 v65, 0xffff0000, v68
    v_mul_f32 v70, {f32(-1.4426950408889634)}, v64
    v_mul_f32 v71, {f32(-1.4426950408889634)}, v65
    v_exp_f32 v70, v70
    v_exp_f32 v71, v71
    v_lshlrev_b32 v66, 16, v69
    v_and_b32 v67, 0xffff0000, v69
    v_add_f32 v70, 1.0, v70
    v_add_f32 v71, 1.0, v71
    v_rcp_f32 v70, v70
    v_rcp_f32 v71, v71
    v_pk_mul_f32 v[64:65], v[64:65], v[70:71]
    v_cvt_pk_bf16_f32 v68, v64, v65
    v_lshlrev_b32 v64, 16, v68
    v_and_b32 v65, 0xffff0000, v68
    v_pk_mul_f32 v[64:65], v[64:65], v[66:67]
    v_cvt_pk_bf16_f32 v68, v64, v65
    """)
    for r in range(4):
        a(f"v_cndmask_b32 v{72+r}, 0, v68, s[{40+2*r}:{41+2*r}]")
    for e in range(4):
        a(f"v_mfma_f32_16x16x32_bf16 v[{80+4*e}:{83+4*e}], v[72:75], v[{48+4*e}:{51+4*e}], 0")
    for q in range(4):
        d = 80 + 4 * q
        a(f"v_pk_add_f32 v[{d}:{d+1}], v[{d}:{d+1}], v[{d+2}:{d+3}]")
    for q in range(4):
        d = 80 + 4 * q
        a(f"v_add_f32 v{96+q}, v{d}, v{d+1}")
    for q in range(4):
        a(f"v_min_u32 v{96+q}, s54, v{96+q}")
    a("global_store_dwordx4 v4, v[96:99], s[26:27] sc1")
    stamp(12)
    flush_stamps([5, 6, 7, 8, 11, 12], wave=0)
    a("s_endpgm")

    a(f"""
    L_final:
    s_mul_i32 s35, s33, 7168
    s_add_u32 s35, s35, {WS_DP + 3072}
    v_lshl_add_u32 v6, v1, 4, s35
    s_lshl_b32 s35, s33, 6
    v_and_b32 v7, 7, v1
    v_lshl_add_u32 v7, v7, 3, s35
    s_barrier
    ds_read_b64 v[14:15], v7 offset:{L_H}
    s_barrier
    """)
    spin_head("L_dpoll", "L_ddone")
    for i in range(7):
        a(f"global_load_dwordx4 v[{64+4*i}:{67+4*i}], v6, s[26:27] offset:{1024*i-3072} sc1")
    a("s_waitcnt vmcnt(0)")
    sent_check(range(64, 92), 10, "L_dpoll")
    a("L_ddone:")
    stamp(13)
    for x, y in ((64, 68), (72, 76), (80, 84), (64, 72), (80, 88), (64, 80)):
        a(f"v_pk_add_f32 v[{x}:{x+1}], v[{x}:{x+1}], v[{y}:{y+1}]\nv_pk_add_f32 v[{x+2}:{x+3}], v[{x+2}:{x+3}], v[{y+2}:{y+3}]")
    for q in range(4):
        a(f"v_add_f32_dpp v{68+q}, v{64+q}, v{64+q} row_ror:8 {DPP}")
    for wd in ("16", "32"):
        for q in range(4): a(f"v_mov_b32 v{72+q}, v{68+q}")
        for q in range(4): a(f"v_permlane{wd}_swap_b32 v{68+q}, v{72+q}")
        a("v_pk_add_f32 v[68:69], v[68:69], v[72:73]\nv_pk_add_f32 v[70:71], v[70:71], v[74:75]")
    a(f"""
    v_cvt_pk_bf16_f32 v72, v68, v69
    v_cvt_pk_bf16_f32 v73, v70, v71
    s_waitcnt lgkmcnt(0)
    v_lshlrev_b32 v64, 16, v14
    v_and_b32 v65, 0xffff0000, v14
    v_lshlrev_b32 v66, 16, v15
    v_and_b32 v67, 0xffff0000, v15
    v_lshlrev_b32 v68, 16, v72
    v_and_b32 v69, 0xffff0000, v72
    v_lshlrev_b32 v70, 16, v73
    v_and_b32 v71, 0xffff0000, v73
    v_pk_add_f32 v[64:65], v[64:65], v[68:69]
    v_pk_add_f32 v[66:67], v[66:67], v[70:71]
    v_cvt_pk_bf16_f32 v72, v64, v65
    v_cvt_pk_bf16_f32 v73, v66, v67
    s_mov_b64 exec, 0xff
    global_store_dwordx2 v7, v[72:73], s[22:23]
    s_cmp_lg_u32 s33, 0
    s_cbranch_scc1 L_fin2
    v_mov_b32 v6, 0
    s_mov_b64 exec, 1
    global_store_dwordx2 v6, v[12:13], s[26:27] sc1
    L_fin2:
    s_mov_b64 exec, -1
    """)
    stamp(14)
    flush_stamps([13, 14])
    a("s_endpgm")

    a("L_warm:")
    if warm:
        a(f"""
        s_mov_b64 exec, 0
        s_cmp_eq_u32 s28, 9
        s_cbranch_scc1 CQ_0
        s_cmp_eq_u32 s28, 10
        s_cbranch_scc1 CA_0
        s_cmp_lt_u32 s30, 14
        s_cbranch_scc1 CW_0
        s_cmp_lt_u32 s30, 21
        s_cbranch_scc1 CF_0
        """)
    a("L_end:\ns_endpgm")
    lines = a.lines
    lines = [l.replace("v_lshlrev_b32 v6, 5, v1", f"v_lshlrev_b32 v6, 5, v1\n    v_add_u32 v6, {WS_FLAGS}, v6") for l in lines]
    lines = "\n".join(lines).split("\n")
    lines = asmkit.fix_hazards(lines)
    lines = asmkit.insert_pads(lines)
    return wrap("\n".join(lines) + "\n", 256, 768, L_END, vgpr=160, sgpr=96)

if __name__ == "__main__":
    open("k_v1.s", "w").write(gen())
    open("k_v1_st.s", "w").write(gen(stamps=True))
```
